```python
import torch

def _softmax(x, axis=-1):
    return torch.softmax(x, dim=axis)
def _gelu(x):
    return torch.nn.functional.gelu(x, approximate="tanh")
def _silu(x):
    return torch.nn.functional.silu(x)
def _sigmoid(x):
    return torch.sigmoid(x)
def _layernorm(x, axis=-1, eps=1e-5):
    m = x.mean(dim=axis, keepdim=True)
    v = x.var(dim=axis, keepdim=True, unbiased=False)
    return (x - m) / torch.sqrt(v + eps)
def _scatter_add(tgt, idx, src, axis=0):
    return tgt.clone().index_add_(axis, idx, src)
def _segment_sum(src, seg, n):
    out = torch.zeros((n,) + src.shape[1:], dtype=src.dtype)
    return out.index_add_(0, seg, src)
def _pad(x, pw):
    flat = tuple(v for pair in reversed(pw) for v in pair)
    return torch.nn.functional.pad(x, flat)

kernel_name = 'parallel_sum__sliding_block_cached__geglu_ffn__decode'

def setup_inputs():

    _w = (lambda a: (lambda t: t.to(torch.bfloat16) if t.is_floating_point() else t)(torch.as_tensor(a)))
    def _A_setup():
        B, Sq, D = 2, 1, 576
        Hq, Hkv, Sk, Dh = 32, 16, 4096, 128
        assert Hq % Hkv == 0, (Hq, Hkv)
        return {
            "x": _w((lambda *s: torch.randn(*s, dtype=torch.bfloat16) * 0.05)(B, Sq, D)),
            "k_cache": _w((lambda *s: torch.randn(*s, dtype=torch.bfloat16) * 3.2)(B, Hkv, Sk, Dh)),
            "v_cache": _w((lambda *s: torch.randn(*s, dtype=torch.bfloat16) * 1.6)(B, Hkv, Sk, Dh)),
            "wq": _w((lambda *s: torch.randn(*s, dtype=torch.bfloat16) * 3.2)(D, Hq * Dh) * (D ** -0.5)),
            "wo": _w((lambda *s: torch.randn(*s, dtype=torch.bfloat16) * 1.6)(Hq * Dh, D) * ((Hq * Dh) ** -0.5)),
        }
    _A_in = _A_setup()

    def _B_setup():
        B, S, D, F = 2, 1, 576, 4608
        return {
            "x": _w((lambda *s: torch.randn(*s, dtype=torch.bfloat16) * 0.05)(B, S, D)),
            "w_gate": _w((lambda *s: torch.randn(*s, dtype=torch.bfloat16) * 0.05)(D, F)),
            "w_up": _w((lambda *s: torch.randn(*s, dtype=torch.bfloat16) * 0.05)(D, F)),
            "w_down": _w((lambda *s: torch.randn(*s, dtype=torch.bfloat16) * 0.05)(F, D)),
        }
    _B_in = _B_setup()

    return {
        "A_x": _A_in["x"],
        "A_k_cache": _A_in["k_cache"],
        "A_v_cache": _A_in["v_cache"],
        "A_wq": _A_in["wq"],
        "A_wo": _A_in["wo"],
        "B_x": _B_in["x"],
        "B_w_gate": _B_in["w_gate"],
        "B_w_up": _B_in["w_up"],
        "B_w_down": _B_in["w_down"],
    }

def reference(A_x, A_k_cache, A_v_cache, A_wq, A_wo, B_x, B_w_gate, B_w_up, B_w_down):
    def _A_ref(x, k_cache, v_cache, wq, wo):
        B, Sq, D = x.shape
        Hq, Dh = 32, 128
        Hkv, Sk = k_cache.shape[1], k_cache.shape[2]
        W = min(4096, max(256, Sk // 4))
        rep = Hq // Hkv
        q = (lambda x, *d: x.permute(*d))((x @ wq).reshape(B, Sq, Hq, Dh), 0, 2, 1, 3)
        k = (lambda x, n, axis: torch.repeat_interleave(x, n, dim=axis))(k_cache[:, :, Sk - W:, :], rep, axis=1)
        v = (lambda x, n, axis: torch.repeat_interleave(x, n, dim=axis))(v_cache[:, :, Sk - W:, :], rep, axis=1)
        scores = torch.einsum("bhqd,bhkd->bhqk", q, k) * (Dh ** -0.5)
        p = _softmax(scores, axis=-1)
        o = torch.einsum("bhqk,bhkd->bhqd", p, v)
        return (lambda x, *d: x.permute(*d))(o, 0, 2, 1, 3).reshape(B, Sq, Hq * Dh) @ wo

    def _B_ref(x, w_gate, w_up, w_down):
        return (_gelu(x @ w_gate) * (x @ w_up)) @ w_down

    x = A_x
    xn = _layernorm(x, axis=-1)
    return x + _A_ref(xn, A_k_cache, A_v_cache, A_wq, A_wo) + _B_ref(xn, B_w_gate, B_w_up, B_w_down)
```

```python
import re

REG_RE = re.compile(r'\b([vs])(\d+)\b|\b([vs])\[(\d+):(\d+)\]|\b(vcc|exec)\b')
TRANS = ('v_exp_', 'v_log_', 'v_rcp_', 'v_rsq_', 'v_sqrt_', 'v_sin_', 'v_cos_')
DPP_RE = re.compile(r'quad_perm|row_shl|row_shr|row_ror|row_mirror|row_half_mirror|row_bcast|row_newbcast|wave_')


def regs_of(opnd):
    out = set()
    for m in REG_RE.finditer(opnd):
        if m.group(1):
            out.add((m.group(1), int(m.group(2))))
        elif m.group(3):
            for i in range(int(m.group(4)), int(m.group(5)) + 1):
                out.add((m.group(3), i))
        else:
            out.add((m.group(6), 0))
    return out


def split_ops(rest):
    ops, depth, cur = [], 0, ''
    for ch in rest:
        if ch == '[':
            depth += 1
        elif ch == ']':
            depth -= 1
        if ch == ',' and depth == 0:
            ops.append(cur.strip())
            cur = ''
        else:
            cur += ch
    if cur.strip():
        ops.append(cur.strip())
    return ops


class Ins:
    __slots__ = ('kind', 'w', 'r', 'srcab', 'srcc', 'dpp', 'perm', 'rl', 'trans', 'stdata', 'states', 'text', 'd')

    def __init__(self):
        self.kind = 'salu'
        self.w = set(); self.r = set(); self.srcab = set(); self.srcc = set()
        self.dpp = set(); self.perm = set(); self.rl = set(); self.trans = False
        self.stdata = set(); self.states = 1; self.text = ''; self.d = None


def parse(text):
    ins = Ins()
    ins.text = text
    t = text.split(';')[0].strip()
    parts = t.split(None, 1)
    mn = parts[0]
    rest = parts[1] if len(parts) > 1 else ''
    ops = split_ops(rest)
    if ops:
        last = ops[-1].split()
        ops[-1] = last[0]
    R = [regs_of(o) for o in ops]
    if mn == 's_nop':
        ins.states = int(rest, 0) + 1
    elif mn.startswith('v_mfma'):
        ins.kind = 'mfma'
        ins.w = R[0]; ins.srcab = R[1] | R[2]; ins.srcc = R[3]; ins.r = ins.srcab | ins.srcc
        ins.d = ops[0]
    elif mn.startswith('v_'):
        ins.kind = 'valu'
        ins.w = set(R[0])
        for x in R[1:]:
            ins.r |= x
        if mn.startswith('v_permlane'):
            ins.w = R[0] | R[1]; ins.r = R[0] | R[1]; ins.perm = set(ins.r)
        if mn.startswith(('v_fmac', 'v_dot2c', 'v_pk_fmac')):
            ins.r |= R[0]
        if mn.startswith(('v_readfirstlane', 'v_readlane')):
            ins.rl = set(R[1])
        if mn.startswith(TRANS):
            ins.trans = True
        if DPP_RE.search(rest):
            ins.dpp = set(R[1])
            ins.r |= R[0]
        assert not mn.startswith('v_cmpx'), 'avoid v_cmpx'
    elif mn.startswith(('buffer_load', 'global_load', 'ds_read', 'ds_bpermute', 'ds_swizzle')):
        ins.kind = 'mem'
        if ' lds' in (' ' + rest + ' ').replace(',', ' '):
            for x in R:
                ins.r |= x
        else:
            ins.w = set(R[0])
            for x in R[1:]:
                ins.r |= x
    elif mn.startswith(('buffer_store', 'global_store', 'ds_write', 'buffer_atomic', 'global_atomic', 'ds_add')):
        ins.kind = 'mem'
        for x in R:
            ins.r |= x
        if mn.endswith(('x4', 'x3')):
            ins.stdata = R[0] if mn.startswith('buffer') else R[1]
    else:
        ins.kind = 'salu'
    return ins


def need(p, i):
    n = 0
    pv = {x for x in p.w if x[0] == 'v'}
    ps = {x for x in p.w if x[0] != 'v'}
    if p.kind == 'valu':
        if i.kind == 'mfma' and pv & i.r:
            n = max(n, 2)
        if pv & i.dpp or pv & i.perm:
            n = max(n, 2)
        if pv & i.rl:
            n = max(n, 1)
        if p.trans and i.kind in ('valu', 'mfma') and pv & i.r:
            n = max(n, 1)
        if ps:
            if i.kind == 'valu' and ps & i.r:
                n = max(n, 2)
            if i.kind == 'mem' and ps & i.r:
                n = max(n, 5)
    if p.kind == 'mfma':
        if i.kind == 'mfma':
            if pv & i.srcab:
                n = max(n, 8)
            if pv & i.srcc:
                n = max(n, 2 if (i.srcc == pv and 'x16_bf16' in p.text.split()[0] and '16x16x16' in p.text) else (0 if i.srcc == pv else 6))
            if pv & i.w and not (i.srcc == pv):
                n = max(n, 8)
        elif i.kind in ('valu', 'mem'):
            if pv & (i.r | i.w):
                n = max(n, 8)
            if i.kind == 'valu' and p.srcc & i.w:
                n = max(n, 3)
    if p.stdata:
        if i.kind == 'valu' and p.stdata & i.w:
            n = max(n, 2)
        elif p.stdata & i.w:
            n = max(n, 1)
    return n


class Asm:
    def __init__(self):
        self.lines = []
        self.hist = []
        self.nops = 0

    def raw(self, text):
        self.lines.append(text)

    def c(self, text):
        self.lines.append('    ; ' + text)

    def label(self, name):
        self.lines.append(name + ':')

    def fence(self):
        self.hist = []

    def __call__(self, text):
        for t in text.strip().split('\n'):
            t = t.strip()
            if not t or t.startswith(';'):
                continue
            self._one(t)

    def _one(self, text):
        ins = parse(text)
        d = 0
        req = 0
        for p in reversed(self.hist):
            n = need(p, ins)
            if n - d > req:
                req = n - d
            d += p.states
            if d > 12:
                break
        if req > 0:
            nop = parse('s_nop %d' % (req - 1))
            self.lines.append('    s_nop %d' % (req - 1))
            self.hist.append(nop)
            self.nops += req
        self.lines.append('    ' + text)
        self.hist.append(ins)
        if len(self.hist) > 16:
            self.hist = self.hist[-16:]

    def text(self):
        return '\n'.join(self.lines) + '\n'


def vr(a, n=1):
    return 'v%d' % a if n == 1 else 'v[%d:%d]' % (a, a + n - 1)


def sr(a, n=1):
    return 's%d' % a if n == 1 else 's[%d:%d]' % (a, a + n - 1)


def interleave(main, filler, every=1):
    out = []
    fi = 0
    for m in main:
        out.append(m)
        for _ in range(every):
            if fi < len(filler):
                out.append(filler[fi]); fi += 1
    out.extend(filler[fi:])
    return out
```

```python
import sys, struct
from asmlib import Asm, vr, sr, interleave

NAME = 'parallel_sum__sliding_block_cached__geglu_ffn__decode'

def f32(x):
    return '0x%08x' % struct.unpack('<I', struct.pack('<f', x))[0]

HEADER = open('cdna_kernels/%s.s.ref' % NAME).read().split('; Override launch geometry')[0]

class Cfg:
    diag = False
    pol = 'nt'
    NF = 72
    NA = 160
    NWO_A = 120
    CONS0 = 88
    sleep1 = 4
    sleep2 = 2
    sleep3 = 2
    pre1 = 0

WS_EPOCH = 0
WS_QP = 0x1000
WS_OP = WS_QP + 256 * 1024
WS_ML = WS_OP + 64 * 2560
WS_FP = WS_ML + 32 * 256
WS_END = WS_FP + 72 * 8704
WS_DIAG = 0x200000
WS_SIZE = 0x400000
L_XN = 0
L_QB = 4608
L_MX = L_QB + 512
L_LS = L_MX + 64
L_AV = L_LS + 64
L_PT = L_AV + 512
L_END = L_PT + 9 * 1024
assert L_AV % 16 == 0 and L_PT % 16 == 0

S_X, S_K, S_V, S_WQ, S_WO, S_BX, S_WG, S_WU, S_WD, S_OUT, S_DBG, S_WS = range(8, 32, 2)
SRD0, SRD1, SRD2, SRDW = 32, 36, 40, 44
S_T = 48
S_E = 52
S_A = 53
S_PAIR = 54
S_SPL = 55
S_RB = 56
S_CH = 57
S_PID = 58
S_CNT = 59
S_HI = 60
S_TMP = 61
S_ST = 70

LOG2E = 1.4426950408889634


def gen(cfg):
    a = Asm()
    pol = cfg.pol
    nstamp = [0]

    def stamp(i):
        if cfg.diag:
            a('s_memrealtime %s' % sr(S_ST + 2 * i, 2))

    def srd(d, p, nbytes):
        a(f'''s_mov_b32 s{d}, s{p}
              s_and_b32 s{d+1}, s{p+1}, 0xffff
              s_mov_b32 s{d+2}, {nbytes}
              s_mov_b32 s{d+3}, 0x20000''')

    def tags():
        for k, add in enumerate((1, 0x48, 0x8f, 0xd6)):
            a(f's_add_u32 s{S_T+k}, s{S_E}, {add}\n s_and_b32 s{S_T+k}, s{S_T+k}, 0xff')

    def tagit(dst, src, vmask):
        for k in range(4):
            a(f'v_bfi_b32 v{dst+k}, v{vmask}, s{S_T+k}, v{src+k}')

    def end_wave():
        if cfg.diag:
            a('s_branch L_DIAG_END')
        else:
            a('s_endpgm')
        a.fence()

    def gather(name, loads, base, vbad, sleep, pre=0, execs=None):
        n = len(loads)
        a(f's_mov_b32 s{S_CNT}, 40000')
        if pre:
            a(f's_sleep {pre}')
        a.label(f'L_{name}_poll')
        for i, ld in enumerate(loads):
            if execs and execs[i] is not None:
                a(execs[i])
            a(f'buffer_load_dwordx4 {vr(base+4*i,4)}, {ld} sc1')
            if execs and execs[i] is not None:
                a('s_mov_b64 exec, -1')
        for i in range(n):
            a(f's_waitcnt vmcnt({n-1-i})')
            if execs and execs[i] is not None:
                a(execs[i])
            for k in range(4):
                a(f'v_xor_b32 v{base+4*i+k}, s{S_T+k}, v{base+4*i+k}')
            if i == 0:
                a(f'v_or_b32 v{vbad}, v{base}, v{base+1}')
            else:
                a(f'v_or3_b32 v{vbad}, v{vbad}, v{base+4*i}, v{base+4*i+1}')
            a(f'v_or3_b32 v{vbad}, v{vbad}, v{base+4*i+2}, v{base+4*i+3}')
            if execs and execs[i] is not None:
                a('s_mov_b64 exec, -1')
        a(f'''v_and_b32 v{vbad}, 0xff, v{vbad}
              v_cmp_ne_u32 vcc, 0, v{vbad}
              s_cbranch_vccz L_{name}_done
              s_sub_u32 s{S_CNT}, s{S_CNT}, 1
              s_cbranch_scc1 L_{name}_done''')
        if sleep:
            a(f's_sleep {sleep}')
        a(f's_branch L_{name}_poll')
        a.label(f'L_{name}_done')

    def xsum(op, v, t):
        return [f'v_mov_b32 v{t}, v{v}', f'v_permlane16_swap_b32 v{v}, v{t}', f'{op} v{v}, v{v}, v{t}',
                f'v_mov_b32 v{t}, v{v}', f'v_permlane32_swap_b32 v{v}, v{t}', f'{op} v{v}, v{v}, v{t}']

    DM = 'row_mask:0xf bank_mask:0xf'

    def red32(v, t):
        return [f'v_add_f32 v{v}, v{v}, v{v} quad_perm:[1,0,3,2] {DM}',
                f'v_add_f32 v{v}, v{v}, v{v} quad_perm:[2,3,0,1] {DM}',
                f'v_add_f32 v{v}, v{v}, v{v} row_half_mirror {DM}'] + xsum('v_add_f32', v, t)

    def masks32(m, t):
        a(f'''v_and_b32 v{t}, 1, v0
              v_lshlrev_b32 v{t}, 4, v{t}
              v_mov_b32 v{t+1}, 0xffff
              v_lshlrev_b32 v{t}, v{t}, v{t+1}
              v_bfe_u32 v{t+1}, v0, 1, 2''')
        for d in range(4):
            a(f'v_cmp_eq_u32 vcc, {d}, v{t+1}\n v_cndmask_b32 v{m+d}, 0, v{t}, vcc')

    def masks16(m, t):
        a(f'''v_and_b32 v{t}, 1, v0
              v_lshlrev_b32 v{t}, 4, v{t}
              v_mov_b32 v{t+1}, 0xffff
              v_lshlrev_b32 v{t}, v{t}, v{t+1}
              v_bfe_u32 v{t+1}, v0, 1, 1''')
        for d in range(2):
            a(f'v_cmp_eq_u32 vcc, {d}, v{t+1}\n v_cndmask_b32 v{m+d}, 0, v{t}, vcc')

    a.label(f'{NAME}_kernel')
    a(f'''s_cmp_ge_u32 s2, 256
          s_cbranch_scc1 L_EXIT
          s_load_dwordx16 s[8:23], s[0:1], 0
          s_load_dwordx8 s[24:31], s[0:1], 64
          v_lshrrev_b32 v1, 6, v0
          v_and_b32 v0, 63, v0
          v_readfirstlane_b32 s3, v1''')
    if cfg.diag:
        for i in range(16):
            a(f's_mov_b64 {sr(S_ST+2*i,2)}, 0')
    stamp(0)
    a(f'''s_mov_b32 s{S_HI}, 0xffff0000
          v_and_b32 v1, 15, v0
          v_lshrrev_b32 v2, 4, v0
          s_sub_u32 s{S_A}, s2, {cfg.NF}
          s_mul_i32 s{S_PAIR}, s{S_A}, 205
          s_lshr_b32 s{S_PAIR}, s{S_PAIR}, 10
          s_mul_i32 s{S_TMP}, s{S_PAIR}, 5
          s_sub_u32 s{S_SPL}, s{S_A}, s{S_TMP}
          s_mul_i32 s{S_RB}, s{S_A}, 171
          s_lshr_b32 s{S_RB}, s{S_RB}, 9
          s_cmp_eq_u32 s3, 0
          s_cbranch_scc1 L_W0
          s_cmp_lt_u32 s2, {cfg.NF}
          s_cbranch_scc1 L_FFN
          s_cmp_ge_u32 s2, {cfg.NF + cfg.NA}
          s_cbranch_scc1 L_HWO
          s_cmp_ge_u32 s3, 8
          s_cbranch_scc1 L_AWO''')

    VK, VV, VQ, VACC, VS, VB, VFR, VO, VM = 16, 48, 80, 88, 104, 112, 120, 128, 4
    a.c('attention wave')
    a(f'''s_setprio 2
          s_sub_u32 s{S_TMP}, s3, 1
          s_lshl_b32 s{S_TMP+1}, s{S_TMP}, 1
          s_mul_i32 s{S_TMP+2}, s{S_SPL}, 13
          s_add_u32 s{S_TMP+2}, s{S_TMP+2}, s{S_TMP+1}
          s_lshl_b32 s{S_TMP+3}, s{S_PAIR}, 20
          s_add_u32 s{S_TMP+3}, s{S_TMP+3}, 786432
          s_lshl_b32 s{S_TMP+4}, s{S_TMP+2}, 12
          s_add_u32 s{S_TMP+3}, s{S_TMP+3}, s{S_TMP+4}
          s_add_u32 s{S_TMP+4}, s{S_TMP+3}, 4096''')
    a(f'''s_cmp_lt_u32 s{S_TMP+2}, 64
          s_cselect_b32 s{S_TMP+3}, s{S_TMP+3}, 0x7f000000
          s_cselect_b32 s{S_TMP+5}, 0, {f32(-1e30)}
          s_cmp_lt_u32 s{S_TMP+1}, 12
          s_cselect_b32 s{S_TMP+4}, s{S_TMP+4}, 0x7f000000
          s_cselect_b32 s{S_TMP+6}, 0, {f32(-1e30)}''')
    a(f'''v_lshrrev_b32 v8, 1, v1
          v_lshlrev_b32 v8, 8, v8
          v_and_b32 v9, 1, v0
          v_lshl_add_u32 v8, v9, 6, v8
          v_lshl_add_u32 v8, v2, 4, v8
          v_lshlrev_b32 v10, 9, v2
          v_lshl_add_u32 v10, v1, 4, v10
          v_add_u32 v9, s{S_TMP+4}, v8
          v_add_u32 v8, s{S_TMP+3}, v8
          v_add_u32 v11, s{S_TMP+4}, v10
          v_add_u32 v10, s{S_TMP+3}, v10
          s_waitcnt lgkmcnt(0)''')
    srd(SRD0, S_K, 33554432)
    srd(SRD1, S_V, 33554432)
    for e in range(2):
        for hf in range(2):
            for t in range(2):
                i = e * 4 + hf * 2 + t
                a(f'buffer_load_dwordx4 {vr(VK+4*i,4)}, v{8+e}, {sr(SRD0,4)}, 0 offen offset:{hf*2048+t*128} {pol}')
    a('s_setprio 1')
    for e in range(2):
        for hf in range(2):
            for ee in range(2):
                i = e * 4 + hf * 2 + ee
                a(f'buffer_load_dwordx4 {vr(VV+4*i,4)}, v{10+e}, {sr(SRD1,4)}, 0 offen offset:{hf*2048+ee*256} {pol}')
    stamp(1)
    masks32(VM, 12)
    for e in range(2):
        for k in range(4):
            a(f'v_mov_b32 v{VB+4*e+k}, s{S_TMP+5+e}')
    a(f'''v_lshrrev_b32 v12, 3, v1
          v_lshlrev_b32 v13, 8, v12
          v_and_b32 v14, 1, v0
          v_lshl_add_u32 v13, v14, 6, v13
          v_lshl_add_u32 v13, v2, 4, v13
          v_lshlrev_b32 v12, 5, v12
          s_lshl_b32 s{S_TMP+1}, s{S_TMP}, 2
          v_add_u32 v14, s{S_TMP+1}, v12
          s_lshl_b32 s{S_TMP+1}, s{S_TMP}, 10
          v_lshlrev_b32 v15, 4, v0
          v_add_u32 v15, s{S_TMP+1}, v15
          s_mov_b32 s{S_TMP+2}, {f32(128 ** -0.5)}
          s_mov_b32 s{S_TMP+3}, {f32(LOG2E)}
          s_barrier''')
    stamp(2)
    a(f'''ds_read_b128 {vr(VQ,4)}, v13 offset:{L_QB}
          ds_read_b128 {vr(VQ+4,4)}, v13 offset:{L_QB+128}
          s_waitcnt vmcnt(8) lgkmcnt(0)''')
    stamp(3)
    for hh in range(4):
        e = hh >> 1
        a(f'v_mfma_f32_16x16x32_bf16 {vr(VACC+4*hh,4)}, {vr(VK+8*hh,4)}, {vr(VQ,4)}, {vr(VB+4*e,4)}')
    for hh in range(4):
        a(f'v_mfma_f32_16x16x32_bf16 {vr(VACC+4*hh,4)}, {vr(VK+8*hh+4,4)}, {vr(VQ+4,4)}, {vr(VACC+4*hh,4)}')
    for hh in range(4):
        A0 = VACC + 4 * hh
        a(f'''v_mov_b32 v{VS+2*hh}, v{A0+1} quad_perm:[1,1,3,3] {DM}
              v_mov_b32 v{VS+2*hh+1}, v{A0+3} quad_perm:[1,1,3,3] {DM}
              v_add_f32 v{VS+2*hh}, v{A0}, v{VS+2*hh} quad_perm:[0,0,2,2] {DM}
              v_add_f32 v{VS+2*hh+1}, v{A0+2}, v{VS+2*hh+1} quad_perm:[0,0,2,2] {DM}''')
    T = VACC
    for hh in range(4):
        a(f'v_cvt_pk_bf16_f32 v{T+hh}, v{VS+2*hh}, v{VS+2*hh+1}')
    for hh in range(4):
        a(f'v_lshlrev_b32 v{VS+2*hh}, 16, v{T+hh}\n v_and_b32 v{VS+2*hh+1}, s{S_HI}, v{T+hh}')
    for k in range(8):
        a(f'v_mul_f32 v{VS+k}, s{S_TMP+2}, v{VS+k}')
    for hh in range(4):
        a(f'v_cvt_pk_bf16_f32 v{T+hh}, v{VS+2*hh}, v{VS+2*hh+1}')
    for hh in range(4):
        a(f'v_lshlrev_b32 v{VS+2*hh}, 16, v{T+hh}\n v_and_b32 v{VS+2*hh+1}, s{S_HI}, v{T+hh}')
    a(f'''v_max3_f32 v{T}, v{VS}, v{VS+1}, v{VS+2}
          v_max3_f32 v{T+1}, v{VS+3}, v{VS+4}, v{VS+5}
          v_max3_f32 v{T}, v{T}, v{VS+6}, v{VS+7}
          v_max_f32 v{T}, v{T}, v{T+1}''')
    for x in xsum('v_max_f32', T, T + 1):
        a(x)
    a(f'''s_mov_b64 exec, 0x101
          ds_write_b32 v14, v{T} offset:{L_MX}
          s_mov_b64 exec, -1
          s_waitcnt lgkmcnt(0)
          s_barrier
          ds_read_b128 {vr(T,4)}, v12 offset:{L_MX}
          ds_read_b128 {vr(T+4,4)}, v12 offset:{L_MX+16}
          s_waitcnt lgkmcnt(0)
          v_max3_f32 v{T}, v{T}, v{T+1}, v{T+2}
          v_max3_f32 v{T+3}, v{T+3}, v{T+4}, v{T+5}
          v_max3_f32 v{T}, v{T}, v{T+3}, v{T+6}
          v_mul_f32 v{T+1}, s{S_TMP+3}, v{T}''')
    for k in range(8):
        a(f'v_fma_f32 v{VS+k}, v{VS+k}, s{S_TMP+3}, -v{T+1}')
    for k in range(8):
        a(f'v_exp_f32 v{VS+k}, v{VS+k}')
    P = VACC + 8
    for k in range(8):
        a(f'v_cvt_pk_bf16_f32 v{P+k}, v{VS+k}, v{VS+k}')
    a(f'''v_pk_add_f32 {vr(VS,2)}, {vr(VS,2)}, {vr(VS+2,2)}
          v_pk_add_f32 {vr(VS+4,2)}, {vr(VS+4,2)}, {vr(VS+6,2)}
          v_pk_add_f32 {vr(VS,2)}, {vr(VS,2)}, {vr(VS+4,2)}
          v_add_f32 v{VS}, v{VS}, v{VS+1}''')
    for x in xsum('v_add_f32', VS, VS + 1):
        a(x)
    a(f'''s_mov_b64 exec, 0x101
          ds_write_b32 v14, v{VS} offset:{L_LS}
          s_mov_b64 exec, -1''')
    stamp(4)
    for k in range(8):
        for d in range(4):
            a(f'v_and_b32 v{VK+4*k+d}, v{VM+d}, v{P+k}')
    for k in range(8):
        a(f's_waitcnt vmcnt({7-k})')
        a(f'v_mfma_f32_16x16x32_bf16 {vr(VO,4)}, {vr(VK+4*k,4)}, {vr(VV+4*k,4)}, {"0" if k == 0 else vr(VO,4)}')
    stamp(5)
    a(f'''ds_write_b128 v15, {vr(VO,4)} offset:{L_PT}
          s_waitcnt lgkmcnt(0)
          s_barrier''')
    end_wave()

    GD, GA, GF, GLO, GHI, GM = 96, 128, 136, 144, 148, 4
    def gemv_addr():
        a(f'''v_lshrrev_b32 v10, 3, v1
              v_lshl_add_u32 v10, v2, 1, v10
              v_mul_u32_u24 v8, 9216, v10
              v_and_b32 v11, 7, v0
              v_lshl_add_u32 v8, v11, 4, v8''')

    def gemv_loads(srdn, soff):
        for f in range(8):
            if f == 4:
                a(f's_add_u32 s{soff}, s{soff}, 4608')
            a(f'buffer_load_dwordx4 {vr(GD+4*f,4)}, v8, {sr(srdn,4)}, s{soff} offen offset:{(f&3)*1152} {pol}')

    a.label('L_AWO')
    a(f'''s_cmp_ge_u32 s{S_A}, {cfg.NWO_A}
          s_cbranch_scc1 L_EXIT
          s_mul_i32 s{S_TMP}, s{S_RB}, 3
          s_sub_u32 s{S_TMP}, s{S_A}, s{S_TMP}
          s_mul_i32 s{S_CH}, s{S_TMP}, 3
          s_add_u32 s{S_CH}, s{S_CH}, s3
          s_sub_u32 s{S_CH}, s{S_CH}, 8
          s_mov_b32 s{S_PID}, s{S_RB}''')
    gemv_addr()
    a(f'''s_mul_i32 s{S_TMP}, s{S_RB}, {64*1152}
          s_lshl_b32 s{S_TMP+1}, s{S_CH}, 7
          s_add_u32 s{S_TMP}, s{S_TMP}, s{S_TMP+1}
          s_waitcnt lgkmcnt(0)
          s_load_dword s{S_E}, {sr(S_WS,2)}, {WS_EPOCH}''')
    srd(SRD0, S_WO, 4096 * 1152)
    a('s_barrier\n s_barrier')
    stamp(1)
    gemv_loads(SRD0, S_TMP)
    stamp(2)
    a('s_barrier\n s_branch L_TAIL')
    a.fence()

    a.label('L_HWO')
    a(f'''s_cmp_ge_u32 s3, 10
          s_cbranch_scc1 L_EXIT
          s_sub_u32 s{S_CH}, s3, 1
          s_sub_u32 s{S_RB}, s2, {cfg.NF + cfg.NA - cfg.NWO_A // 3}
          s_mov_b32 s{S_PID}, s{S_RB}''')
    gemv_addr()
    a(f'''s_mul_i32 s{S_TMP}, s{S_RB}, {64*1152}
          s_lshl_b32 s{S_TMP+1}, s{S_CH}, 7
          s_add_u32 s{S_TMP}, s{S_TMP}, s{S_TMP+1}
          s_waitcnt lgkmcnt(0)
          s_load_dword s{S_E}, {sr(S_WS,2)}, {WS_EPOCH}''')
    srd(SRD0, S_WO, 4096 * 1152)
    gemv_loads(SRD0, S_TMP)
    stamp(2)
    a('s_branch L_TAIL')
    a.fence()

    FG, FX, FFR, FACC = 32, 128, 144, 152
    a.label('L_FFN')
    a(f'''s_cmp_ge_u32 s3, 10
          s_cbranch_scc1 L_EXIT
          s_sub_u32 s{S_CH}, s3, 1
          s_add_u32 s{S_PID}, s2, 64''')
    a(f'''s_mul_i32 s{S_TMP}, s{S_CH}, {64*9216}
          s_lshl_b32 s{S_TMP+1}, s2, 7
          s_add_u32 s{S_TMP}, s{S_TMP}, s{S_TMP+1}
          v_mul_u32_u24 v12, {16*9216}, v2
          v_and_b32 v13, 7, v0
          v_lshl_add_u32 v12, v13, 4, v12
          v_add_u32 v12, s{S_TMP}, v12
          v_mov_b32 v13, 0
          v_cmp_gt_u32 vcc, 8, v1
          s_mov_b32 s{S_TMP+2+ (S_TMP % 2)}, 9216
          s_mov_b32 s{S_TMP+3+ (S_TMP % 2)}, 0
          s_waitcnt lgkmcnt(0)
          v_mov_b32 v14, s{S_WU}
          v_mov_b32 v15, s{S_WU+1}
          v_mov_b32 v16, s{S_WG}
          v_mov_b32 v17, s{S_WG+1}
          v_cndmask_b32 v14, v14, v16, vcc
          v_cndmask_b32 v15, v15, v17, vcc
          v_lshl_add_u64 v[14:15], v[12:13], 0, v[14:15]''')
    SST = S_TMP + 2 + (S_TMP % 2)
    for f in range(16):
        a(f'global_load_dwordx4 {vr(FG+4*f,4)}, v[14:15], off {pol}')
        if f < 15:
            a(f'v_lshl_add_u64 v[14:15], v[14:15], 0, {sr(SST,2)}')
    stamp(1)
    a(f's_load_dword s{S_E}, {sr(S_WS,2)}, {WS_EPOCH}')
    gemv_addr()
    masks32(20, 16)
    a(f'''v_bfe_u32 v16, v0, 3, 1
          v_mul_u32_u24 v16, 2304, v16
          v_lshl_add_u32 v16, v2, 6, v16
          s_lshl_b32 s{S_TMP}, s{S_CH}, 8
          v_add_u32 v16, s{S_TMP}, v16
          s_lshl_b32 s{S_TMP}, s{S_CH}, 10
          v_lshlrev_b32 v17, 4, v0
          v_add_u32 v17, s{S_TMP}, v17
          s_mul_i32 s{S_TMP}, s2, {64*1152}
          s_lshl_b32 s{S_TMP+1}, s{S_CH}, 7
          s_add_u32 s{S_TMP}, s{S_TMP}, s{S_TMP+1}''')
    srd(SRD0, S_WD, 4608 * 1152)
    a('s_barrier')
    for q in range(4):
        a(f'ds_read_b128 {vr(FX+4*q,4)}, v16 offset:{L_XN+16*q}')
    a('s_waitcnt lgkmcnt(0)')
    for k in range(8):
        if k == 4:
            a(f's_add_u32 s{S_TMP}, s{S_TMP}, 4608')
        a(f'buffer_load_dwordx4 {vr(GD+4*k,4)}, v8, {sr(SRD0,4)}, s{S_TMP} offen offset:{(k&3)*1152} {pol}')
        for e in range(2):
            for d in range(4):
                a(f'v_and_b32 v{FFR+4*e+d}, v{20+d}, v{FX+2*k+e}')
        a(f's_waitcnt vmcnt({15-k})')
        for e in range(2):
            f = 2 * k + e
            a(f'v_mfma_f32_16x16x32_bf16 {vr(FACC,4)}, {vr(FFR+4*e,4)}, {vr(FG+4*f,4)}, {"0" if f == 0 else vr(FACC,4)}')
    stamp(2)
    a(f'''ds_write_b128 v17, {vr(FACC,4)} offset:{L_PT}
          s_waitcnt lgkmcnt(0)
          s_barrier''')

    a.label('L_TAIL')
    masks16(GM, 12)
    a(f'''v_bfe_u32 v12, v0, 2, 1
          v_lshlrev_b32 v12, 8, v12
          v_lshl_add_u32 v9, v10, 5, v12
          s_waitcnt lgkmcnt(0)''')
    tags()
    srd(SRDW, S_WS, WS_SIZE)
    a(f'''v_and_b32 v12, 1, v2
          v_lshlrev_b32 v12, 2, v12
          v_bfe_u32 v13, v0, 1, 2
          v_add_u32 v12, v12, v13
          v_mul_u32_u24 v12, 8704, v12
          v_and_b32 v13, 1, v0
          v_lshl_add_u32 v12, v13, 5, v12
          v_lshrrev_b32 v13, 5, v0
          v_lshl_add_u32 v12, v13, 4, v12
          s_mul_i32 s{S_TMP}, s{S_CH}, {8*8704}
          s_lshl_b32 s{S_TMP+1}, s{S_PID}, 6
          s_add_u32 s{S_TMP}, s{S_TMP}, s{S_TMP+1}
          s_add_u32 s{S_TMP}, s{S_TMP}, {WS_FP}
          v_mov_b32 v13, 0xff
          s_barrier''')
    stamp(3)
    a(f'''ds_read_b128 {vr(GA,4)}, v9 offset:{L_AV}
          ds_read_b128 {vr(GA+4,4)}, v9 offset:{L_AV+16}
          s_waitcnt lgkmcnt(0)''')
    FR = 16
    for f in range(8):
        for d in range(2):
            a(f'v_and_b32 v{FR+2*f+d}, v{GM+d}, v{GA+f}')
    for f in range(8):
        a(f's_waitcnt vmcnt({7-f})')
        a(f'v_mfma_f32_16x16x16_bf16 {vr(GLO,4)}, {vr(FR+2*f,2)}, {vr(GD+4*f,2)}, {"0" if f == 0 else vr(GLO,4)}')
        a(f'v_mfma_f32_16x16x16_bf16 {vr(GHI,4)}, {vr(FR+2*f,2)}, {vr(GD+4*f+2,2)}, {"0" if f == 0 else vr(GHI,4)}')
    stamp(4)
    for k in range(4):
        a(f'v_permlane32_swap_b32 v{GLO+k}, v{GHI+k}')
    for k in range(4):
        a(f'v_add_f32 v{GLO+k}, v{GHI+k}, v{GLO+k} row_ror:8 {DM}')
    tagit(GLO, GLO, 13)
    a(f'''s_mov_b32 exec_lo, 0x00ff00ff
          s_mov_b32 exec_hi, 0x00ff00ff
          buffer_store_dwordx4 {vr(GLO,4)}, v12, {sr(SRDW,4)}, s{S_TMP} offen sc1
          s_mov_b64 exec, -1''')
    stamp(5)
    end_wave()

    XR, XF, XD, XE, WFR, WACC, WD_ = 10, 20, 40, 144, 60, 68, 72
    a.label('L_W0')
    a('s_setprio 3')
    a(f'''v_and_b32 v3, 7, v0
          v_lshl_add_u32 v8, v2, 3, v3
          v_mul_u32_u24 v8, 36, v8
          v_bfe_u32 v9, v0, 3, 1
          v_mul_u32_u24 v19, 1152, v9
          v_add_u32 v8, v8, v19
          v_mul_u32_u24 v19, 147456, v2
          v_lshl_add_u32 v19, v1, 4, v19
          s_and_b32 s{S_TMP}, s2, 7
          s_mul_i32 s{S_TMP+1}, s{S_TMP}, {72*8192}
          s_lshr_b32 s{S_TMP+2}, s2, 3
          s_lshl_b32 s{S_TMP+2}, s{S_TMP+2}, 8
          s_add_u32 s{S_TMP+1}, s{S_TMP+1}, s{S_TMP+2}
          s_waitcnt lgkmcnt(0)''')
    srd(SRD0, S_X, 2304)
    a(f'''buffer_load_dwordx4 {vr(XR,4)}, v8, {sr(SRD0,4)}, 0 offen
          buffer_load_dwordx4 {vr(XR+4,4)}, v8, {sr(SRD0,4)}, 0 offen offset:16
          buffer_load_dword v{XR+8}, v8, {sr(SRD0,4)}, 0 offen offset:32''')
    srd(SRD1, S_WQ, 576 * 8192)
    for f in range(18):
        a(f'buffer_load_dwordx4 {vr(WD_+4*f,4)}, v19, {sr(SRD1,4)}, s{S_TMP+1} offen {pol}')
        if f < 17:
            a(f's_add_u32 s{S_TMP+1}, s{S_TMP+1}, 8192')
    a(f's_load_dword s{S_E}, {sr(S_WS,2)}, {WS_EPOCH}')
    stamp(1)
    masks32(4, 38)
    srd(SRDW, S_WS, WS_SIZE)
    a(f'''v_lshlrev_b32 v8, 1, v8
          v_mul_u32_u24 v9, 2304, v9
          v_mul_u32_u24 v19, 72, v2
          v_add_u32 v9, v9, v19
          s_mul_i32 s{S_TMP}, s{S_TMP}, 288
          v_add_u32 v9, s{S_TMP}, v9
          s_mov_b32 s{S_TMP+2}, {f32(1.0/576)}
          s_waitcnt vmcnt(18)''')
    stamp(2)
    for k in range(9):
        a(f'v_lshlrev_b32 v{XF+2*k}, 16, v{XR+k}\n v_and_b32 v{XF+2*k+1}, s{S_HI}, v{XR+k}')
    SM, SV_, TT = 38, 58, 39
    a(f'v_pk_add_f32 {vr(SM,2)}, {vr(XF,2)}, {vr(XF+2,2)}')
    a(f'v_pk_add_f32 {vr(SV_,2)}, {vr(XF+4,2)}, {vr(XF+6,2)}')
    a(f'v_pk_add_f32 {vr(SM,2)}, {vr(SM,2)}, {vr(XF+8,2)}')
    a(f'v_pk_add_f32 {vr(SV_,2)}, {vr(SV_,2)}, {vr(XF+10,2)}')
    a(f'v_pk_add_f32 {vr(SM,2)}, {vr(SM,2)}, {vr(XF+12,2)}')
    a(f'v_pk_add_f32 {vr(SV_,2)}, {vr(SV_,2)}, {vr(XF+14,2)}')
    a(f'v_pk_add_f32 {vr(SM,2)}, {vr(SM,2)}, {vr(XF+16,2)}')
    a(f'v_pk_add_f32 {vr(SM,2)}, {vr(SM,2)}, {vr(SV_,2)}')
    a(f'v_add_f32 v{SM}, v{SM}, v{SM+1}')
    for x in red32(SM, TT):
        a(x)
    a(f'v_mul_f32 v{SM}, s{S_TMP+2}, v{SM}')
    NEGB = 'op_sel_hi:[1,0] neg_lo:[0,1] neg_hi:[0,1]'
    for k in range(9):
        a(f'v_pk_add_f32 {vr(XD+2*k,2)}, {vr(XF+2*k,2)}, {vr(SM,2)} {NEGB}')
    a(f'v_pk_mul_f32 {vr(SV_,2)}, {vr(XD,2)}, {vr(XD,2)}')
    for k in range(1, 9):
        a(f'v_pk_fma_f32 {vr(SV_,2)}, {vr(XD+2*k,2)}, {vr(XD+2*k,2)}, {vr(SV_,2)}')
    a(f'v_add_f32 v{SV_}, v{SV_}, v{SV_+1}')
    a(f'v_cvt_pk_bf16_f32 v{SM}, v{SM}, v{SM}\n v_and_b32 v{SM}, s{S_HI}, v{SM}')
    main = red32(SV_, SV_ + 1) + [
        f'v_mul_f32 v{SV_}, s{S_TMP+2}, v{SV_}',
        f'v_cvt_pk_bf16_f32 v{SV_}, v{SV_}, v{SV_}', f'v_and_b32 v{SV_}, s{S_HI}, v{SV_}',
        f'v_add_f32 v{SV_}, {f32(1e-5)}, v{SV_}',
        f'v_cvt_pk_bf16_f32 v{SV_}, v{SV_}, v{SV_}', f'v_and_b32 v{SV_}, s{S_HI}, v{SV_}',
        f'v_sqrt_f32 v{SV_}, v{SV_}',
        f'v_cvt_pk_bf16_f32 v{SV_}, v{SV_}, v{SV_}', f'v_and_b32 v{SV_}, s{S_HI}, v{SV_}',
        f'v_rcp_f32 v{SV_}, v{SV_}']
    fill = []
    for k in range(9):
        fill.append(f'v_pk_add_f32 {vr(XD+2*k,2)}, {vr(XF+2*k,2)}, {vr(SM,2)} {NEGB}')
    for k in range(9):
        fill.append(f'v_cvt_pk_bf16_f32 v{XR+k}, v{XD+2*k}, v{XD+2*k+1}')
    for k in range(9):
        fill.append(f'v_lshlrev_b32 v{XF+2*k}, 16, v{XR+k}')
        fill.append(f'v_and_b32 v{XF+2*k+1}, s{S_HI}, v{XR+k}')
    for x in interleave(main, fill, 2):
        a(x)
    for k in range(9):
        a(f'v_pk_mul_f32 {vr(XF+2*k,2)}, {vr(XF+2*k,2)}, {vr(SV_,2)} op_sel_hi:[1,0]')
    for k in range(18):
        a(f'v_cvt_pk_bf16_f32 v{XD+k}, v{XF+k}, v{XF+k}')
        if k % 4 == 3:
            q = k // 4
            a(f'ds_write2_b64 v8, {vr(XD+4*q,2)}, {vr(XD+4*q+2,2)} offset0:{2*q} offset1:{2*q+1}')
    a(f'ds_write_b64 v8, {vr(XD+16,2)} offset:64')
    for q in range(4):
        a(f'ds_read2_b64 {vr(XF+4*q,4)}, v9 offset0:{2*q} offset1:{2*q+1}')
    a(f'ds_read_b64 {vr(XF+16,2)}, v9 offset:64')
    a(f'''v_lshrrev_b32 v8, 1, v2
          v_lshlrev_b32 v8, 9, v8
          v_lshl_add_u32 v8, v1, 5, v8
          v_and_b32 v9, 1, v2
          v_lshl_add_u32 v8, v9, 4, v8
          v_mov_b32 v3, 0xff
          s_lshl_b32 s{S_TMP}, s2, 10
          s_add_u32 s{S_TMP}, s{S_TMP}, {WS_QP}
          s_waitcnt lgkmcnt(0)''')
    stamp(3)
    tags()
    for d in range(4):
        a(f'v_and_b32 v{WFR+d}, v{4+d}, v{XF}')
    for f in range(18):
        if f < 17:
            for d in range(4):
                a(f'v_and_b32 v{WFR+4*((f+1)&1)+d}, v{4+d}, v{XF+f+1}')
        a(f's_waitcnt vmcnt({17-f})')
        a(f'v_mfma_f32_16x16x32_bf16 {vr(WACC,4)}, {vr(WFR+4*(f&1),4)}, {vr(WD_+4*f,4)}, {"0" if f == 0 else vr(WACC,4)}')
    tagit(WACC, WACC, 3)
    a(f'buffer_store_dwordx4 {vr(WACC,4)}, v8, {sr(SRDW,4)}, s{S_TMP} offen sc1')
    stamp(4)
    a(f'''s_cmp_lt_u32 s2, {cfg.NF}
          s_cbranch_scc1 L_W0F
          s_cmp_ge_u32 s2, {cfg.NF + cfg.NA}
          s_cbranch_scc1 L_W0H''')

    G = 72
    a(f'''v_lshrrev_b32 v9, 5, v0
          v_lshlrev_b32 v9, 13, v9
          v_and_b32 v10, 31, v0
          v_lshl_add_u32 v9, v10, 4, v9
          s_and_b32 s{S_TMP}, s{S_PAIR}, 15
          s_lshl_b32 s{S_TMP+1}, s{S_TMP}, 14
          s_lshr_b32 s{S_TMP+2}, s{S_PAIR}, 4
          s_lshl_b32 s{S_TMP+3}, s{S_TMP+2}, 9
          s_add_u32 s{S_TMP+1}, s{S_TMP+1}, s{S_TMP+3}
          s_add_u32 s{S_TMP+1}, s{S_TMP+1}, {WS_QP}
          s_add_u32 s{S_TMP+3}, s{S_TMP+1}, 4096
          v_lshlrev_b32 v10, 3, v0''')
    gather('q', [f'v9, {sr(SRDW,4)}, s{S_TMP+1+2*(kc>>2)} offen offset:{(kc&3)*1024}' for kc in range(8)], G, 11, cfg.sleep1, cfg.pre1)
    stamp(5)
    for st in (16, 8, 4):
        for o in range(0, st, 2):
            a(f'v_pk_add_f32 {vr(G+o,2)}, {vr(G+o,2)}, {vr(G+st+o,2)}')
    a(f'''v_cvt_pk_bf16_f32 v{G}, v{G}, v{G+1}
          v_cvt_pk_bf16_f32 v{G+1}, v{G+2}, v{G+3}
          ds_write_b64 v10, {vr(G,2)} offset:{L_QB}''')
    a(f'''v_lshrrev_b32 v9, 5, v0
          v_lshrrev_b32 v10, 3, v1
          v_lshl_add_u32 v10, v9, 1, v10
          v_mul_u32_u24 v10, 2560, v10
          v_and_b32 v11, 7, v0
          v_lshl_add_u32 v10, v11, 5, v10
          v_and_b32 v11, 1, v2
          v_lshl_add_u32 v10, v11, 4, v10
          s_waitcnt lgkmcnt(0)
          s_barrier
          s_mul_i32 s{S_TMP+3}, s{S_TMP+2}, 5
          s_add_u32 s{S_TMP+3}, s{S_TMP+3}, s{S_SPL}
          s_mul_i32 s{S_TMP+1}, s{S_TMP}, {4*2560}
          s_lshl_b32 s{S_TMP+4}, s{S_TMP+3}, 8
          s_add_u32 s{S_TMP+1}, s{S_TMP+1}, s{S_TMP+4}
          s_add_u32 s{S_TMP+1}, s{S_TMP+1}, {WS_OP}
          s_lshl_b32 s{S_TMP+4}, s{S_TMP}, 9
          s_lshl_b32 s{S_TMP+3}, s{S_TMP+3}, 4
          s_add_u32 s{S_TMP+4}, s{S_TMP+4}, s{S_TMP+3}
          s_add_u32 s{S_TMP+4}, s{S_TMP+4}, {WS_ML}
          v_lshlrev_b32 v11, 8, v9
          v_lshlrev_b32 v12, 5, v9
          v_lshlrev_b32 v13, 4, v0
          s_barrier
          ds_read_b128 {vr(16,4)}, v12 offset:{L_MX}
          ds_read_b128 {vr(20,4)}, v12 offset:{L_MX+16}
          s_waitcnt lgkmcnt(0)
          v_max3_f32 v16, v16, v17, v18
          v_max3_f32 v19, v19, v20, v21
          v_max3_f32 v16, v16, v19, v22
          v_mov_b32 v18, 0
          v_mov_b32 v19, 0
          s_barrier''')
    stamp(6)
    for w in range(7):
        a(f'ds_read_b128 {vr(G+4*w,4)}, v13 offset:{L_PT+1024*w}')
    a(f'''ds_read_b128 {vr(24,4)}, v12 offset:{L_LS}
          ds_read_b128 {vr(28,4)}, v12 offset:{L_LS+16}''')
    lg = (lambda n: 0) if cfg.diag else (lambda n: n)
    for w in range(1, 7):
        a(f's_waitcnt lgkmcnt({lg(8-w)})')
        a(f'v_pk_add_f32 {vr(G,2)}, {vr(G,2)}, {vr(G+4*w,2)}')
        a(f'v_pk_add_f32 {vr(G+2,2)}, {vr(G+2,2)}, {vr(G+4*w+2,2)}')
    tagit(G, G, 3)
    a(f'''buffer_store_dwordx4 {vr(G,4)}, v10, {sr(SRDW,4)}, s{S_TMP+1} offen sc1
          s_waitcnt lgkmcnt(0)
          v_pk_add_f32 {vr(24,2)}, {vr(24,2)}, {vr(26,2)}
          v_pk_add_f32 {vr(24,2)}, {vr(24,2)}, {vr(28,2)}
          v_add_f32 v24, v24, v25
          v_add_f32 v17, v24, v30''')
    tagit(16, 16, 3)
    a(f'''s_mov_b32 exec_lo, 1
          s_mov_b32 exec_hi, 1
          buffer_store_dwordx4 {vr(16,4)}, v11, {sr(SRDW,4)}, s{S_TMP+4} offen sc1
          s_mov_b64 exec, -1''')
    stamp(7)
    a(f'''s_cmp_ge_u32 s{S_A}, {cfg.NWO_A}
          s_cbranch_scc1 L_CONSQ
          s_branch L_GATHO''')
    a.fence()

    a.label('L_W0H')
    a(f's_sub_u32 s{S_RB}, s2, {cfg.NF + cfg.NA - cfg.NWO_A // 3}')
    a.label('L_GATHO')
    a(f'''v_bfe_u32 v9, v0, 4, 1
          v_mul_u32_u24 v10, 1280, v9
          v_lshl_add_u32 v10, v1, 4, v10
          v_mul_u32_u24 v9, 80, v9
          s_mul_i32 s{S_TMP}, s{S_RB}, 2560
          s_add_u32 s{S_TMP}, s{S_TMP}, {WS_OP}
          s_lshr_b32 s{S_TMP+1}, s{S_RB}, 1
          s_lshl_b32 s{S_TMP+1}, s{S_TMP+1}, 8
          s_add_u32 s{S_TMP+1}, s{S_TMP+1}, {WS_ML}
          s_mov_b32 s{S_TMP+2}, {f32(LOG2E)}
          v_and_b32 v12, 31, v0
          v_lshlrev_b32 v12, 4, v12''')
    lds = [f'v9, {sr(SRDW,4)}, s{S_TMP+1} offen offset:{16*s}' for s in range(5)]
    lds += [f'v10, {sr(SRDW,4)}, s{S_TMP} offen offset:{256*s}' for s in range(5)]
    gather('o', lds, G, 11, cfg.sleep2)
    stamp(8)
    ML = G
    OD = G + 20
    a(f'''v_max3_f32 v16, v{ML}, v{ML+4}, v{ML+8}
          v_max3_f32 v16, v16, v{ML+12}, v{ML+16}''')
    for s in range(5):
        a(f'v_sub_f32 v{ML+4*s}, v{ML+4*s}, v16')
    for s in range(5):
        a(f'v_mul_f32 v{ML+4*s}, s{S_TMP+2}, v{ML+4*s}')
    for s in range(5):
        a(f'v_exp_f32 v{ML+4*s}, v{ML+4*s}')
    a(f'v_mul_f32 v18, v{ML}, v{ML+1}')
    for s in range(1, 5):
        a(f'v_fmac_f32 v18, v{ML+4*s}, v{ML+4*s+1}')
    a(f'v_rcp_f32 v18, v18')
    for h in range(2):
        a(f'v_pk_mul_f32 {vr(20+2*h,2)}, {vr(OD+2*h,2)}, {vr(ML,2)} op_sel_hi:[1,0]')
    for s in range(1, 5):
        for h in range(2):
            a(f'v_pk_fma_f32 {vr(20+2*h,2)}, {vr(OD+4*s+2*h,2)}, {vr(ML+4*s,2)}, {vr(20+2*h,2)} op_sel_hi:[1,0,1]')
    for h in range(2):
        a(f'v_pk_mul_f32 {vr(20+2*h,2)}, {vr(20+2*h,2)}, {vr(18,2)} op_sel_hi:[1,0]')
    for k in range(4):
        a(f'v_cvt_pk_bf16_f32 v{20+k}, v{20+k}, v{20+k}')
    a(f'''ds_write_b128 v12, {vr(20,4)} offset:{L_AV}
          s_waitcnt lgkmcnt(0)
          s_barrier''')
    stamp(9)
    a(f'''s_cmp_ge_u32 s2, {cfg.NF + cfg.NA}
          s_cbranch_scc1 L_W0END''')
    a.label('L_CONSQ')
    a(f'''s_cmp_lt_u32 s{S_A}, {cfg.CONS0}
          s_cbranch_scc1 L_W0END''')
    a(f'''s_sub_u32 s{S_TMP}, s{S_A}, {cfg.CONS0}
          s_mul_i32 s{S_TMP+1}, s{S_TMP}, 8704
          s_add_u32 s{S_TMP+1}, s{S_TMP+1}, {WS_FP}
          s_add_u32 s{S_TMP+2}, s{S_TMP+1}, 4096
          s_add_u32 s{S_TMP+3}, s{S_TMP+1}, 8192
          v_lshlrev_b32 v9, 4, v0
          s_lshr_b32 s{S_TMP+4}, s{S_TMP}, 3
          s_lshl_b32 s{S_TMP+4}, s{S_TMP+4}, 7
          s_and_b32 s{S_TMP+5}, s{S_TMP}, 3
          s_lshl_b32 s{S_TMP+5}, s{S_TMP+5}, 5
          s_add_u32 s{S_TMP+4}, s{S_TMP+4}, s{S_TMP+5}
          s_bitcmp1_b32 s{S_TMP}, 2
          s_cselect_b32 s{S_TMP+5}, 1152, 0
          s_add_u32 s{S_TMP+4}, s{S_TMP+4}, s{S_TMP+5}
          v_and_b32 v10, 3, v0
          v_lshlrev_b32 v10, 3, v10
          v_lshl_add_u32 v10, v2, 1, v10
          v_add_u32 v10, s{S_TMP+4}, v10
          buffer_load_ushort v12, v10, {sr(SRD0,4)}, 0 offen''')
    srd(SRD1, S_OUT, 2304)
    for k in range(4):
        a(f'v_mov_b32 v{G+32+k}, 0')
    lds = [f'v9, {sr(SRDW,4)}, s{S_TMP+1+(i>>2)} offen offset:{(i&3)*1024}' for i in range(9)]
    gather('f', lds, G, 11, cfg.sleep3, execs=[None] * 8 + ['s_mov_b32 exec_hi, 0'])
    stamp(10)
    for h in range(2):
        a(f'v_pk_add_f32 {vr(G+2*h,2)}, {vr(G+2*h,2)}, {vr(G+4+2*h,2)}')
        a(f'v_pk_add_f32 {vr(G+8+2*h,2)}, {vr(G+8+2*h,2)}, {vr(G+12+2*h,2)}')
        a(f'v_pk_add_f32 {vr(G+16+2*h,2)}, {vr(G+16+2*h,2)}, {vr(G+20+2*h,2)}')
        a(f'v_pk_add_f32 {vr(G+24+2*h,2)}, {vr(G+24+2*h,2)}, {vr(G+28+2*h,2)}')
    for h in range(2):
        a(f'v_pk_add_f32 {vr(G+2*h,2)}, {vr(G+2*h,2)}, {vr(G+8+2*h,2)}')
        a(f'v_pk_add_f32 {vr(G+16+2*h,2)}, {vr(G+16+2*h,2)}, {vr(G+24+2*h,2)}')
    for h in range(2):
        a(f'v_pk_add_f32 {vr(G+16+2*h,2)}, {vr(G+16+2*h,2)}, {vr(G+32+2*h,2)}')
    for k in range(4):
        a(f'v_permlane32_swap_b32 v{G+k}, v{G+16+k}')
    for h in range(2):
        a(f'v_pk_add_f32 {vr(G+2*h,2)}, {vr(G+2*h,2)}, {vr(G+16+2*h,2)}')
    a(f'''v_permlane16_swap_b32 v{G}, v{G+1}
          v_permlane16_swap_b32 v{G+2}, v{G+3}
          v_add_f32 v{G}, v{G}, v{G+1}
          v_add_f32 v{G+2}, v{G+2}, v{G+3}
          v_add_f32 v{G}, v{G}, v{G} row_ror:4 {DM}
          v_add_f32 v{G+2}, v{G+2}, v{G+2} row_ror:4 {DM}
          v_add_f32 v{G}, v{G}, v{G} row_ror:8 {DM}
          v_add_f32 v{G+2}, v{G+2}, v{G+2} row_ror:8 {DM}
          v_lshlrev_b32 v12, 16, v12
          v_permlane32_swap_b32 v{G}, v{G+2}
          v_cvt_pk_bf16_f32 v{G}, v{G}, v{G+2}
          v_lshlrev_b32 v{G+1}, 16, v{G}
          v_and_b32 v{G+2}, s{S_HI}, v{G}
          v_add_f32 v12, v12, v{G+1}
          v_cvt_pk_bf16_f32 v12, v12, v12
          v_and_b32 v12, s{S_HI}, v12
          v_add_f32 v12, v12, v{G+2}
          v_cvt_pk_bf16_f32 v12, v12, v12
          s_mov_b32 exec_lo, 0x000f000f
          s_mov_b32 exec_hi, 0x000f000f
          buffer_store_short v12, v10, {sr(SRD1,4)}, 0 offen
          s_mov_b64 exec, -1''')
    stamp(11)
    a(f'''s_cmp_lg_u32 s{S_TMP}, 0
          s_cbranch_scc1 L_W0END
          s_add_u32 s{S_E}, s{S_E}, 1
          v_mov_b32 v9, s{S_E}
          v_mov_b32 v10, {WS_EPOCH}
          s_mov_b64 exec, 1
          buffer_store_dword v9, v10, {sr(SRDW,4)}, 0 offen sc1
          s_mov_b64 exec, -1''')
    a.label('L_W0END')
    end_wave()

    a.label('L_W0F')
    beta = 0.7978845608028654
    c1 = -2.0 * LOG2E * beta
    c2 = c1 * 0.044715
    a(f'''v_lshlrev_b32 v13, 4, v0
          v_lshrrev_b32 v9, 1, v2
          v_lshlrev_b32 v9, 8, v9
          v_and_b32 v10, 7, v0
          v_lshl_add_u32 v9, v10, 5, v9
          v_and_b32 v10, 1, v2
          v_lshl_add_u32 v9, v10, 4, v9
          v_mov_b32 v14, {f32(c1)}
          s_mov_b32 s{S_TMP}, {f32(c2)}
          s_barrier
          s_barrier''')
    stamp(6)
    for w in range(9):
        a(f'ds_read_b128 {vr(G+4*w,4)}, v13 offset:{L_PT+1024*w}')
    for w in range(1, 9):
        a(f's_waitcnt lgkmcnt({lg(8-w)})')
        a(f'v_pk_add_f32 {vr(G,2)}, {vr(G,2)}, {vr(G+4*w,2)}')
        a(f'v_pk_add_f32 {vr(G+2,2)}, {vr(G+2,2)}, {vr(G+4*w+2,2)}')
    a(f'''v_cvt_pk_bf16_f32 v16, v{G}, v{G+1}
          v_cvt_pk_bf16_f32 v17, v{G+2}, v{G+3}
          v_lshlrev_b32 v20, 16, v16
          v_and_b32 v21, s{S_HI}, v16
          v_lshlrev_b32 v22, 16, v17
          v_and_b32 v23, s{S_HI}, v17''')
    for k in range(4):
        a(f'v_mul_f32 v{24+k}, v{20+k}, v{20+k}')
    for k in range(4):
        a(f'v_fma_f32 v{24+k}, v{24+k}, s{S_TMP}, v14')
    for k in range(4):
        a(f'v_mul_f32 v{24+k}, v{24+k}, v{20+k}')
    for k in range(4):
        a(f'v_exp_f32 v{24+k}, v{24+k}')
    for k in range(4):
        a(f'v_add_f32 v{24+k}, 1.0, v{24+k}')
    for k in range(4):
        a(f'v_rcp_f32 v{24+k}, v{24+k}')
    for k in range(4):
        a(f'v_mul_f32 v{24+k}, v{24+k}, v{20+k}')
    a(f'''v_cvt_pk_bf16_f32 v16, v24, v25
          v_cvt_pk_bf16_f32 v17, v26, v27
          v_lshlrev_b32 v24, 16, v16
          v_and_b32 v25, s{S_HI}, v16
          v_lshlrev_b32 v26, 16, v17
          v_and_b32 v27, s{S_HI}, v17''')
    for k in range(4):
        a(f'v_mul_f32 v{24+k}, v{20+k}, v{24+k} row_ror:8 {DM}')
    for k in range(4):
        a(f'v_cvt_pk_bf16_f32 v{24+k}, v{24+k}, v{24+k}')
    a(f'''s_mov_b32 exec_lo, 0x00ff00ff
          s_mov_b32 exec_hi, 0x00ff00ff
          ds_write_b128 v9, {vr(24,4)} offset:{L_AV}
          s_mov_b64 exec, -1
          s_waitcnt lgkmcnt(0)
          s_barrier''')
    stamp(9)
    end_wave()

    if cfg.diag:
        a.label('L_DIAG_END')
        stamp(15)
        a('s_waitcnt vmcnt(0) lgkmcnt(0)')
        a(f's_memrealtime {sr(S_ST+28,2)}')
        srd(SRDW, S_WS, WS_SIZE)
        a(f'''s_mul_i32 s{S_TMP}, s2, 11
              s_add_u32 s{S_TMP}, s{S_TMP}, s3
              s_lshl_b32 s{S_TMP}, s{S_TMP}, 7
              s_add_u32 s{S_TMP}, s{S_TMP}, {WS_DIAG}
              s_getreg_b32 s{S_ST+26}, hwreg(HW_REG_XCC_ID)
              s_getreg_b32 s{S_ST+27}, hwreg(HW_REG_HW_ID)
              v_mov_b32 v1, 0
              s_mov_b64 exec, 1
              s_waitcnt lgkmcnt(0)''')
        for i in range(8):
            for k in range(4):
                a(f'v_mov_b32 v{4+k}, s{S_ST+4*i+k}')
            a(f'buffer_store_dwordx4 v[4:7], v1, {sr(SRDW,4)}, s{S_TMP} offen offset:{16*i}')
    a.label('L_EXIT')
    a('s_endpgm')

    body = a.text()
    out = HEADER
    out += '; Generated by gen/gen.py (hand-written generator); one persistent launch, 1 workgroup per CU.\n'
    out += f'; @launch grid=(256,1,1) block=(704,1,1) lds={L_END}\n'
    out += f'''.amdgcn_target "amdgcn-amd-amdhsa--gfx950"
.text
.globl {NAME}_kernel
.p2align 8
.type {NAME}_kernel,@function
{body}.section .rodata,"a"
.p2align 6
.amdhsa_kernel {NAME}_kernel
  .amdhsa_next_free_vgpr 168
  .amdhsa_next_free_sgpr 102
  .amdhsa_accum_offset 168
  .amdhsa_group_segment_fixed_size 0
  .amdhsa_kernarg_size 96
  .amdhsa_user_sgpr_count 2
  .amdhsa_user_sgpr_kernarg_segment_ptr 1
  .amdhsa_system_sgpr_workgroup_id_x 1
  .amdhsa_float_denorm_mode_32 3
.end_amdhsa_kernel
'''
    return out


if __name__ == '__main__':
    cfg = Cfg()
    outp = 'cdna_kernels/%s.s' % NAME
    for arg in sys.argv[1:]:
        k, v = arg.split('=', 1)
        if k == 'out':
            outp = v
        else:
            cur = getattr(cfg, k)
            setattr(cfg, k, type(cur)(int(v)) if isinstance(cur, (bool, int)) else v)
    open(outp, 'w').write(gen(cfg))
    print('wrote', outp)
```
